```python
import torch

def _softmax(x, axis=-1):
    return torch.softmax(x, dim=axis)

def _gelu(x):
    return torch.nn.functional.gelu(x, approximate='tanh')

def _silu(x):
    return torch.nn.functional.silu(x)

def _sigmoid(x):
    return torch.sigmoid(x)

def _layernorm(x, axis=-1, eps=1e-05):
    m = x.mean(dim=axis, keepdim=True)
    v = x.var(dim=axis, keepdim=True, unbiased=False)
    return (x - m) / torch.sqrt(v + eps)

def _scatter_add(tgt, idx, src, axis=0):
    return tgt.clone().index_add_(axis, idx, src)

def _segment_sum(src, seg, n):
    out = torch.zeros((n,) + src.shape[1:], dtype=src.dtype)
    return out.index_add_(0, seg, src)

def _pad(x, pw):
    flat = tuple((v for pair in reversed(pw) for v in pair))
    return torch.nn.functional.pad(x, flat)
kernel_name = 'adaLN_cond__sliding_block__swiglu_ffn__prompt'

def setup_inputs():

    _w = lambda a: (lambda t: t.to(torch.bfloat16) if t.is_floating_point() else t)(torch.as_tensor(a))

    def _A_setup():
        B, S, D = (1, 2048, 640)
        return {'x': _w((lambda *s: torch.randn(*s, dtype=torch.bfloat16) * 0.05)(B, S, D)), 'wqkv': _w((lambda *s: torch.randn(*s, dtype=torch.bfloat16) * 0.05)(D, 3 * D)), 'wo': _w((lambda *s: torch.randn(*s, dtype=torch.bfloat16) * 0.05)(D, D))}
    _A_in = _A_setup()

    def _B_setup():
        B, S, D, F = (1, 2048, 640, 1536)
        return {'x': _w((lambda *s: torch.randn(*s, dtype=torch.bfloat16) * 0.05)(B, S, D)), 'w_gate': _w((lambda *s: torch.randn(*s, dtype=torch.bfloat16) * 0.05)(D, F)), 'w_up': _w((lambda *s: torch.randn(*s, dtype=torch.bfloat16) * 0.05)(D, F)), 'w_down': _w((lambda *s: torch.randn(*s, dtype=torch.bfloat16) * 0.05)(F, D))}
    _B_in = _B_setup()
    return {'A_x': _A_in['x'], 'A_wqkv': _A_in['wqkv'], 'A_wo': _A_in['wo'], 'B_x': _B_in['x'], 'B_w_gate': _B_in['w_gate'], 'B_w_up': _B_in['w_up'], 'B_w_down': _B_in['w_down'], 'c': _w((lambda *s: torch.randn(*s, dtype=torch.bfloat16) * 0.1)(1, 640) * 8.0), 'w_mod': _w((lambda *s: torch.randn(*s, dtype=torch.bfloat16) * 0.1)(640, 6 * 640) * 640 ** (-0.5) * 8.0)}

def reference(A_x, A_wqkv, A_wo, B_x, B_w_gate, B_w_up, B_w_down, c, w_mod):

    def _A_ref(x, wqkv, wo):
        B, S, D = x.shape
        H = 32
        Dh = D // H
        W = 256
        qkv = (lambda x, *d: x.permute(*d))((x @ wqkv).reshape(B, S, 3, H, Dh), 2, 0, 3, 1, 4)
        q, k, v = (qkv[0], qkv[1], qkv[2])
        scores = torch.einsum('bhqd,bhkd->bhqk', q, k) * Dh ** (-0.5)
        idx = torch.arange(S)
        mask = (idx[:, None] - idx[None, :] >= 0) & (idx[:, None] - idx[None, :] < W)
        scores = torch.where(mask[None, None], scores, -1000000000.0)
        p = _softmax(scores, axis=-1)
        o = torch.einsum('bhqk,bhkd->bhqd', p, v)
        return (lambda x, *d: x.permute(*d))(o, 0, 2, 1, 3).reshape(B, S, D) @ wo

    def _B_ref(x, w_gate, w_up, w_down):
        g = _silu(x @ w_gate)
        u = x @ w_up
        return g * u @ w_down
    x = A_x
    mod = (_silu(c) @ w_mod).reshape(c.shape[0], 6, 1, -1)
    sa, ca, ga, sb, cb, gb = (mod[:, 0].clone(), mod[:, 1].clone(), mod[:, 2].clone(), mod[:, 3].clone(), mod[:, 4].clone(), mod[:, 5].clone())
    h = _layernorm(x, axis=-1) * (1 + ca) + sa
    x = x + ga * _A_ref(h, A_wqkv, A_wo)
    h = _layernorm(x, axis=-1) * (1 + cb) + sb
    x = x + gb * _B_ref(h, B_w_gate, B_w_up, B_w_down)
    return x
```

```python
import re

REG_RE = re.compile(r'^(-?)(?:abs\()?([vas])(?:(\d+)|\[(\d+):(\d+)\])\)?$')

def regs_of(tok):
    tok = tok.strip()
    if tok in ('vcc',): return [('s', 106), ('s', 107)]
    if tok == 'vcc_lo': return [('s', 106)]
    if tok == 'vcc_hi': return [('s', 107)]
    if tok == 'exec': return [('exec', 0)]
    if tok == 'm0': return [('m0', 0)]
    m = REG_RE.match(tok)
    if not m: return []
    k = m.group(2)
    if m.group(3) is not None:
        return [(k, int(m.group(3)))]
    return [(k, i) for i in range(int(m.group(4)), int(m.group(5)) + 1)]

TRANS = ('v_exp_f32', 'v_log_f32', 'v_rcp_f32', 'v_rsq_f32', 'v_sqrt_f32', 'v_sin_f32', 'v_cos_f32', 'v_rcp_iflag_f32')

class Inst:
    __slots__ = ('text', 'op', 'reads', 'writes', 'kind', 'passes', 'srcc', 'dpp', 'ws', 'ab', 'wide_store', 'sdata')
    def __init__(self, text):
        self.text = text
        t = text.split(';')[0].strip()
        self.reads = set(); self.writes = set(); self.kind = 'other'; self.passes = 0
        self.srcc = set(); self.dpp = False; self.ws = 1; self.ab = set(); self.wide_store = False; self.sdata = set()
        if not t or t.endswith(':') or t.startswith('.'):
            self.op = ''; self.kind = 'label' if t.endswith(':') else 'none'; self.ws = 0
            return
        parts = t.split(None, 1)
        op = parts[0]; self.op = op
        rest = parts[1] if len(parts) > 1 else ''
        ops = []; cur = ''; depth = 0
        for ch in rest:
            if ch in '[(': depth += 1
            if ch in '])': depth -= 1
            if ch == ',' and depth == 0:
                ops.append(cur.strip()); cur = ''
            else:
                cur += ch
        if cur.strip(): ops.append(cur.strip())
        mods = []
        if ops:
            sp = ops[-1].split()
            if len(sp) > 1:
                ops[-1] = sp[0]; mods = sp[1:]
        R = lambda i: regs_of(ops[i]) if i < len(ops) else []
        if op == 's_nop':
            self.kind = 'nop'; self.ws = int(ops[0], 0) + 1; return
        if op.startswith('v_mfma'):
            self.kind = 'mfma'
            self.writes.update(R(0)); self.ab.update(R(1)); self.ab.update(R(2)); self.srcc.update(R(3))
            self.reads.update(self.ab); self.reads.update(self.srcc)
            self.passes = 8 if '32x32' in op else 4
            return
        if op.startswith('v_'):
            self.kind = 'valu'
            self.dpp = '_dpp' in op
            base = op.replace('_e32', '').replace('_e64', '').replace('_dpp', '')
            if base in TRANS: self.kind = 'trans'
            if base.startswith('v_permlane'):
                self.kind = 'permlane'
                self.writes.update(R(0)); self.writes.update(R(1)); self.reads.update(R(0)); self.reads.update(R(1))
                return
            if base.startswith('v_cmpx'):
                self.writes.update(R(0)); self.writes.add(('exec', 0))
                for i in range(1, len(ops)): self.reads.update(R(i))
                return
            self.writes.update(R(0))
            start = 1
            if '_co_' in base:
                self.writes.update(R(1)); start = 2
            for i in range(start, len(ops)): self.reads.update(R(i))
            if base in ('v_fmac_f32', 'v_dot2c_f32_bf16', 'v_pk_fmac_f16', 'v_writelane_b32'):
                self.reads.update(R(0))
            if base in ('v_readfirstlane_b32', 'v_readlane_b32'): self.kind = 'readlane'
            if base == 'v_cndmask_b32' and len(ops) == 3:
                self.reads.update([('s', 106), ('s', 107)])
            return
        if op.startswith('ds_'):
            self.kind = 'ds'
            if op.startswith('ds_read') or op.startswith('ds_bpermute') or op.startswith('ds_swizzle') or op.startswith('ds_permute'):
                self.writes.update(R(0))
                for i in range(1, len(ops)): self.reads.update(R(i))
            else:
                for i in range(0, len(ops)): self.reads.update(R(i))
            return
        if op.startswith('buffer_') or op.startswith('global_'):
            self.kind = 'vmem'
            if op in ('buffer_wbl2', 'buffer_inv'): return
            is_lds = 'lds' in mods or '_lds_' in op
            if is_lds:
                self.kind = 'vmem_lds'
                for i in range(len(ops)): self.reads.update(R(i))
                self.reads.add(('m0', 0))
            elif 'load' in op:
                self.writes.update(R(0))
                for i in range(1, len(ops)): self.reads.update(R(i))
            else:
                for i in range(len(ops)): self.reads.update(R(i))
                if op.startswith('buffer_store') and ('x4' in op or 'x3' in op):
                    self.wide_store = True; self.sdata.update(R(0))
                if op.startswith('global_store') and ('x4' in op or 'x3' in op):
                    self.wide_store = True; self.sdata.update(R(1))
                if 'atomic' in op and 'sc0' in mods:
                    self.writes.update(R(0))
            return
        if op.startswith('s_'):
            self.kind = 'salu'
            if op in ('s_waitcnt', 's_barrier', 's_endpgm', 's_branch', 's_sleep', 's_setprio') or op.startswith('s_cbranch'):
                return
            if op.startswith('s_cmp'):
                for i in range(len(ops)): self.reads.update(R(i))
                return
            if op.startswith('s_load') or op.startswith('s_memtime') or op.startswith('s_memrealtime'):
                self.kind = 'smem'
            self.writes.update(R(0))
            for i in range(1, len(ops)): self.reads.update(R(i))
            if 'saveexec' in op:
                self.writes.add(('exec', 0)); self.reads.add(('exec', 0))
            return

VALU_KINDS = ('valu', 'trans', 'permlane', 'readlane')

def need(prod, cons):
    n = 0
    pv = prod.kind in VALU_KINDS
    cv = cons.kind in VALU_KINDS
    if pv:
        wv = {r for r in prod.writes if r[0] in 'va'}
        ws = {r for r in prod.writes if r[0] == 's'}
        if cons.kind == 'mfma' and (wv & cons.reads): n = max(n, 2)
        if cv and cons.dpp and (wv & cons.reads): n = max(n, 2)
        if cons.kind == 'permlane' and (wv & cons.reads): n = max(n, 2)
        if cons.kind == 'readlane' and (wv & cons.reads): n = max(n, 1)
        if prod.kind == 'trans' and cv and (wv & cons.reads): n = max(n, 1)
        if prod.kind == 'trans' and cons.kind == 'mfma' and (wv & cons.reads): n = max(n, 2)
        if ws:
            if cv and (ws & cons.reads): n = max(n, 4 if cons.kind == 'readlane' else 2)
            if cons.kind in ('vmem', 'vmem_lds') and (ws & cons.reads): n = max(n, 5)
            if cons.kind in ('salu', 'smem') and (ws & cons.reads): n = max(n, 1)
        if ('exec', 0) in prod.writes:
            if cons.kind in ('readlane', 'permlane', 'mfma'): n = max(n, 4)
            if cv and cons.dpp: n = max(n, 5)
    if prod.kind == 'salu' and ('m0', 0) in prod.writes and cons.kind == 'vmem_lds': n = max(n, 1)
    if prod.kind == 'mfma':
        p = prod.passes
        big = {4: 8, 8: 12}[p]
        if cons.kind == 'mfma':
            if prod.writes & cons.ab: n = max(n, big)
            if prod.writes & cons.srcc:
                if not (prod.writes == cons.srcc and prod.passes == cons.passes):
                    n = max(n, {4: 6, 8: 10}[p])
            if (prod.writes & cons.writes) and not (prod.writes == cons.srcc):
                n = max(n, big)
        elif cv or cons.kind in ('ds', 'vmem', 'vmem_lds'):
            if prod.writes & (cons.reads | cons.writes): n = max(n, big)
        if cv and (prod.srcc & cons.writes): n = max(n, {4: 3, 8: 7}[p])
    if prod.wide_store and (prod.sdata & cons.writes):
        n = max(n, 2)
    return n

class Prog:
    def __init__(self):
        self.ins = []
        self.vm = []
        self.lg = []
        self.nops_added = 0
    def raw(self, text):
        self.ins.append(Inst(text))
    def __call__(self, text, tag=None):
        for line in text.strip().split('\n'):
            line = line.strip()
            if not line: continue
            self._emit(line, tag)
    def _emit(self, line, tag):
        i = Inst(line)
        if i.kind not in ('label', 'none'):
            dist = 0; req = 0
            for p in reversed(self.ins):
                if p.kind == 'label':
                    break
                if dist >= 20: break
                r = need(p, i)
                if r > dist: req = max(req, r - dist)
                dist += p.ws
            while req > 0:
                k = min(req, 16)
                self.ins.append(Inst(f's_nop {k-1}')); self.nops_added += 1
                req -= k
        self.ins.append(i)
        if i.kind in ('vmem', 'vmem_lds') and i.op not in ('buffer_wbl2', 'buffer_inv'):
            self.vm.append(tag)
        if i.kind == 'ds':
            self.lg.append(tag)
        if i.kind == 'smem':
            self.lg.append('__smem__')
        if i.op == 's_waitcnt':
            m = re.search(r'vmcnt\((\d+)\)', line)
            if m:
                n = int(m.group(1)); self.vm = self.vm[len(self.vm) - n:] if n < len(self.vm) else self.vm
                if n == 0: self.vm = []
            m = re.search(r'lgkmcnt\((\d+)\)', line)
            if m:
                n = int(m.group(1)); self.lg = self.lg[len(self.lg) - n:] if n < len(self.lg) else self.lg
                if n == 0: self.lg = []
    def _cnt(self, lst, tags):
        if not isinstance(tags, (list, tuple, set)): tags = [tags]
        last = -1
        for idx, t in enumerate(lst):
            if t in tags: last = idx
        if last < 0: return None
        return len(lst) - 1 - last
    def wait_vm(self, tags):
        n = self._cnt(self.vm, tags)
        if n is None: return
        assert n <= 63, n
        self(f's_waitcnt vmcnt({n})')
    def wait_lg(self, tags):
        n = self._cnt(self.lg, tags)
        if n is None: return
        if '__smem__' in self.lg: n = 0
        n = min(n, 15)
        self(f's_waitcnt lgkmcnt({n})')
    def text(self):
        out = []
        for i in self.ins:
            if i.kind == 'label' or i.text.startswith('.'):
                out.append(i.text)
            else:
                out.append('    ' + i.text)
        return '\n'.join(out)

def vr(b, n=1, k='v'):
    return f'{k}{b}' if n == 1 else f'{k}[{b}:{b+n-1}]'
def ar(b, n=1): return vr(b, n, 'a')
def sr(b, n=1): return vr(b, n, 's')

def interleave(main, fill, ratio=None):
    out = []
    nm, nf = len(main), len(fill)
    j = 0
    for i, m in enumerate(main):
        out.append(m)
        tgt = (nf * (i + 1) + nm - 1) // nm if i < nm - 1 else nf
        while j < tgt:
            out.append(fill[j]); j += 1
    if nm == 0: out = list(fill)
    return out
```

```python
import sys
sys.path.insert(0, 'gen')
from asmlib import *

MODP = 0x0000000
XH   = 0x0100000
QK   = 0x0400000
VF   = 0x0A00000
OF   = 0x0D00000
X1F  = 0x1000000
ST   = 0x1300000
HF   = 0x1400000
WS_SIZE = 0x2000000

KA = dict(x=0, wqkv=8, wo=16, bx=24, wg=32, wu=40, wd=48, c=56, wmod=64, out=72, dbg=80, ws=88)
SIZES = dict(x=2048*640*2, wqkv=640*1920*2, wo=640*640*2, wg=640*1536*2, wu=640*1536*2, wd=1536*640*2,
             c=1280, wmod=640*3840*2, out=2048*640*2, ws=WS_SIZE)
LOG2E = 0x3fb8aa3b

def f32hex(x):
    import struct
    return '0x%08x' % struct.unpack('<I', struct.pack('<f', x))[0]

def load_srds(p, names, sbase, tmpbase):
    for i, n in enumerate(names):
        p(f's_load_dwordx2 {sr(tmpbase + 2*i, 2)}, s[0:1], {KA[n]}')
    p('s_waitcnt lgkmcnt(0)')
    d = {}
    for i, n in enumerate(names):
        b = sbase + 4*i
        p(f's_mov_b32 s{b}, s{tmpbase + 2*i}')
        p(f's_and_b32 s{b+1}, s{tmpbase + 2*i + 1}, 0xffff')
        p(f's_mov_b32 s{b+2}, {SIZES[n]}')
        p(f's_mov_b32 s{b+3}, 0x00020000')
        d[n] = sr(b, 4)
    return d

def header(name):
    return f""".globl {name}
.p2align 8
.type {name},@function
{name}:"""

def descriptor(name, nv, na, ns=102):
    acc = (nv + 3) // 4 * 4
    total = acc + na if na else nv
    return f""".p2align 6
.amdhsa_kernel {name}
  .amdhsa_next_free_vgpr {total}
  .amdhsa_next_free_sgpr {ns}
  .amdhsa_accum_offset {acc}
  .amdhsa_group_segment_fixed_size 0
  .amdhsa_kernarg_size 96
  .amdhsa_user_sgpr_count 2
  .amdhsa_user_sgpr_kernarg_segment_ptr 1
  .amdhsa_system_sgpr_workgroup_id_x 1
.end_amdhsa_kernel"""

STAMPS = False
STAMP_OFF = 0x1E00000
def stamp(p, i):
    if STAMPS:
        p(f's_memtime {sr(60+2*i, 2)}')
def stamp_flush(p, n, ws, vtmp, kidx, wavesreg):
    if not STAMPS: return
    p('s_waitcnt lgkmcnt(0)')
    p(f's_lshl_b32 s58, s2, 3')
    p(f's_add_u32 s58, s58, {wavesreg}')
    p(f's_lshl_b32 s58, s58, 6')
    p(f's_add_u32 s58, s58, {STAMP_OFF + kidx*0x20000}')
    p(f'v_mov_b32 v{vtmp+1}, 0')
    for i in range(n):
        p(f'v_mov_b32 v{vtmp}, s{60+2*i}')
        p(f'buffer_store_dword v{vtmp}, v{vtmp+1}, {ws}, s58 offen offset:{4*i}')

def bf16_round(p, dst, src):
    p(f'v_cvt_pk_bf16_f32 {dst}, {src}, {src}')
    p(f'v_lshlrev_b32 {dst}, 16, {dst}')

def half_sum(p, v, t):
    p(f'v_mov_b32 {t}, {v}')
    p(f'v_permlane32_swap_b32 {v}, {t}')
    p(f'v_add_f32 {v}, {v}, {t}')

def ln_stats(p, s1, s2, t):
    p(f'v_mul_f32 {s1}, {f32hex(1/640)}, {s1}')
    p(f'v_mul_f32 {s2}, {f32hex(1/640)}, {s2}')
    p(f'v_fma_f32 {s2}, -{s1}, {s1}, {s2}')
    p(f'v_max_f32 {s2}, 0, {s2}')
    bf16_round(p, s1, s1)
    bf16_round(p, s2, s2)
    p(f'v_add_f32 {s2}, {f32hex(1e-5)}, {s2}')
    bf16_round(p, s2, s2)
    p(f'v_sqrt_f32 {s2}, {s2}')
    bf16_round(p, s2, s2)
    p(f'v_rcp_f32 {s2}, {s2}')

def gen_k0():
    p = Prog()
    name = 'k0_kernel'
    p.raw(header(name))
    p('s_cmp_ge_u32 s2, 304')
    p('s_cbranch_scc1 K0_END')
    S = load_srds(p, ['x', 'c', 'wmod', 'ws'], 84, 40)
    p('v_and_b32 v1, 63, v0')
    p('v_lshrrev_b32 v2, 6, v0')
    p('s_cmp_ge_u32 s2, 240')
    p('s_cbranch_scc1 K0_LN')
    p('s_mul_i32 s4, s2, 1093')
    p('s_lshr_b32 s4, s4, 16')
    p('s_mul_i32 s5, s4, 60')
    p('s_sub_u32 s5, s2, s5')
    p('s_mul_i32 s6, s4, 160')
    p('v_mul_u32_u24 v3, 40, v2')
    p('v_lshrrev_b32 v4, 3, v1')
    p('v_add3_u32 v3, v3, v4, s6')
    p('v_lshlrev_b32 v5, 1, v3')
    p('v_mul_u32_u24 v6, 7680, v3')
    p('v_and_b32 v7, 7, v1')
    p('v_lshlrev_b32 v7, 4, v7')
    p('s_lshl_b32 s7, s5, 7')
    p('v_add3_u32 v6, v6, v7, s7')
    for i in range(5):
        p(f's_mov_b32 s{30+i}, {i*61440}')
    for i in range(5):
        p(f'buffer_load_ushort v{10+i}, v5, {S["c"]}, 0 offen offset:{16*i}', tag='c')
    for i in range(5):
        p(f'buffer_load_dwordx4 {vr(20+4*i,4)}, v6, {S["wmod"]}, s{30+i} offen', tag=f'w{i}')
    p.wait_vm('c')
    for i in range(5):
        c = f'v{10+i}'; t = f'v{15}'
        p(f'v_lshlrev_b32 {c}, 16, {c}')
        p(f'v_mul_f32 {t}, {f32hex(-1.4426950408889634)}, {c}')
        p(f'v_exp_f32 {t}, {t}')
        p(f'v_add_f32 {t}, 1.0, {t}')
        p(f'v_rcp_f32 {t}, {t}')
        p(f'v_mul_f32 {c}, {c}, {t}')
        bf16_round(p, c, c)
    for e in range(8):
        p(f'v_mov_b32 v{40+e}, 0')
    for i in range(5):
        p.wait_vm(f'w{i}')
        for r in range(4):
            src = 20 + 4*i + r
            p(f'v_lshlrev_b32 v16, 16, v{src}')
            p(f'v_and_b32 v17, 0xffff0000, v{src}')
            p(f'v_fmac_f32 v{40+2*r}, v16, v{10+i}')
            p(f'v_fmac_f32 v{41+2*r}, v17, v{10+i}')
    p('v_lshlrev_b32 v8, 5, v0')
    p('ds_write_b128 v8, v[40:43]')
    p('ds_write_b128 v8, v[44:47] offset:16')
    p('s_waitcnt lgkmcnt(0)')
    p('s_barrier')
    p('v_readfirstlane_b32 s8, v2')
    p('s_cmp_lg_u32 s8, 0')
    p('s_cbranch_scc1 K0_END')
    p('v_lshlrev_b32 v8, 2, v1')
    for g in range(32):
        p(f'ds_read_b32 v{48+g}, v8 offset:{g*256}')
    p('s_waitcnt lgkmcnt(0)')
    for st in (16, 8, 4, 2, 1):
        for g in range(st):
            p(f'v_add_f32 v{48+g}, v{48+g}, v{48+g+st}')
    p('s_mul_i32 s9, s4, 15360')
    p('s_lshl_b32 s10, s5, 8')
    p('s_add_u32 s9, s9, s10')
    p(f's_add_u32 s9, s9, {MODP}')
    p(f'buffer_store_dword v48, v8, {S["ws"]}, s9 offen')
    p('s_endpgm')
    p.raw('K0_LN:')
    p('s_sub_u32 s4, s2, 240')
    p('v_and_b32 v3, 31, v1')
    p('v_lshrrev_b32 v4, 5, v1')
    p('s_lshl_b32 s5, s4, 5')
    p('v_add_u32 v5, s5, v3')
    p('v_mul_u32_u24 v5, 1280, v5')
    p('v_lshlrev_b32 v6, 4, v4')
    p('v_mul_u32_u24 v7, 320, v2')
    p('v_add3_u32 v5, v5, v6, v7')
    for f in range(10):
        p(f'buffer_load_dwordx4 {vr(20+4*f,4)}, v5, {S["x"]}, 0 offen offset:{32*f}', tag=f'x{f}')
    p('v_mov_b32 v10, 0')
    p('v_mov_b32 v11, 0')
    for f in range(10):
        p.wait_vm(f'x{f}')
        for r in range(4):
            src = 20 + 4*f + r; lo = 64 + 8*f + 2*r; hi = lo + 1
            p(f'v_lshlrev_b32 v{lo}, 16, v{src}')
            p(f'v_and_b32 v{hi}, 0xffff0000, v{src}')
            p(f'v_add_f32 v10, v10, v{lo}')
            p(f'v_fmac_f32 v11, v{lo}, v{lo}')
            p(f'v_add_f32 v10, v10, v{hi}')
            p(f'v_fmac_f32 v11, v{hi}, v{hi}')
    half_sum(p, 'v10', 'v12')
    half_sum(p, 'v11', 'v12')
    p('v_lshlrev_b32 v8, 8, v2')
    p('v_lshl_add_u32 v8, v3, 3, v8')
    p('ds_write_b64 v8, v[10:11]')
    p('s_waitcnt lgkmcnt(0)')
    p('s_barrier')
    p('v_lshlrev_b32 v8, 3, v3')
    for w in range(4):
        p(f'ds_read_b64 {vr(12+2*w,2)}, v8 offset:{256*w}')
    p('s_waitcnt lgkmcnt(0)')
    p('v_add_f32 v10, v12, v14'); p('v_add_f32 v11, v13, v15')
    p('v_add_f32 v12, v16, v18'); p('v_add_f32 v13, v17, v19')
    p('v_add_f32 v10, v10, v12'); p('v_add_f32 v11, v11, v13')
    ln_stats(p, 'v10', 'v11', 'v12')
    p('s_mul_i32 s6, s4, 40960')
    p(f's_add_u32 s6, s6, {XH}')
    p('v_mul_u32_u24 v8, 10240, v2')
    p('v_lshl_add_u32 v8, v1, 4, v8')
    for f in range(10):
        for r in range(4):
            lo = 64 + 8*f + 2*r; hi = lo + 1; dst = 20 + 4*f + r
            p(f'v_sub_f32 v{lo}, v{lo}, v10')
            p(f'v_sub_f32 v{hi}, v{hi}, v10')
            p(f'v_cvt_pk_bf16_f32 v12, v{lo}, v{hi}')
            p(f'v_lshlrev_b32 v{lo}, 16, v12')
            p(f'v_and_b32 v{hi}, 0xffff0000, v12')
            p(f'v_mul_f32 v{lo}, v{lo}, v11')
            p(f'v_mul_f32 v{hi}, v{hi}, v11')
            p(f'v_cvt_pk_bf16_f32 v{dst}, v{lo}, v{hi}')
        if f < 4:
            p(f'buffer_store_dwordx4 {vr(20+4*f,4)}, v8, {S["ws"]}, s6 offen offset:{1024*f}')
        else:
            if f == 4 or f == 8:
                p('s_add_u32 s6, s6, 4096')
            p(f'buffer_store_dwordx4 {vr(20+4*f,4)}, v8, {S["ws"]}, s6 offen offset:{1024*(f%4)}')
    p.raw('K0_END:')
    p('s_endpgm')
    return p, descriptor(name, 144, 0), f'; @launch kernel={name} grid=(304,1,1) block=(256,1,1) lds=8192'

def mod_consts_issue(p, ws, shift_col, scale_col, vt, tag):
    p(f'v_min_u32 v{vt}, 159, v0')
    p(f'v_lshlrev_b32 v{vt+1}, 4, v{vt}')
    for ks in range(4):
        p(f's_mov_b32 s56, {MODP + ks*15360 + shift_col*4}')
        p(f'buffer_load_dwordx4 {vr(vt+2+4*ks,4)}, v{vt+1}, {ws}, s56 offen', tag=tag)
        p(f's_mov_b32 s57, {MODP + ks*15360 + scale_col*4}')
        p(f'buffer_load_dwordx4 {vr(vt+18+4*ks,4)}, v{vt+1}, {ws}, s57 offen', tag=tag)

def mod_consts_finish(p, vt, tag, ct_base):
    p.wait_vm(tag)
    for e in range(4):
        a = vt + 2 + e
        p(f'v_add_f32 v{a}, v{a}, v{a+4}')
        p(f'v_add_f32 v{a+8}, v{a+8}, v{a+12}')
        p(f'v_add_f32 v{a}, v{a}, v{a+8}')
        bf16_round(p, f'v{a}', f'v{a}')
        b = vt + 18 + e
        p(f'v_add_f32 v{b}, v{b}, v{b+4}')
        p(f'v_add_f32 v{b+8}, v{b+8}, v{b+12}')
        p(f'v_add_f32 v{b}, v{b}, v{b+8}')
        bf16_round(p, f'v{b}', f'v{b}')
        p(f'v_add_f32 v{b}, 1.0, v{b}')
        bf16_round(p, f'v{b}', f'v{b}')
    p(f'v_lshrrev_b32 v{vt+1}, 1, v{vt}')
    p(f'v_lshlrev_b32 v{vt+1}, 6, v{vt+1}')
    p(f'v_and_b32 v{vt}, 1, v{vt}')
    p(f'v_lshl_add_u32 v{vt+1}, v{vt}, 4, v{vt+1}')
    p(f'v_add_u32 v{vt+1}, {ct_base}, v{vt+1}')
    p(f'ds_write_b128 v{vt+1}, {vr(vt+18,4)}')
    p(f'ds_write_b128 v{vt+1}, {vr(vt+2,4)} offset:32')

def mod_consts_read(p, vaddr, vlane, ct_base, vconst):
    p(f'v_lshrrev_b32 {vaddr}, 5, {vlane}')
    p(f'v_lshlrev_b32 {vaddr}, 6, {vaddr}')
    p(f'v_and_b32 v{vconst}, 15, {vlane}')
    p(f'v_lshl_add_u32 {vaddr}, v{vconst}, 2, {vaddr}')
    p(f'v_add_u32 {vaddr}, {ct_base}, {vaddr}')
    for f in range(40):
        p(f'ds_read_b32 v{vconst+f}, {vaddr} offset:{128*f}', tag='ct')

DPP = lambda e: f'row_newbcast:{e} row_mask:0xf bank_mask:0xf'

def gen_k1():
    p = Prog()
    name = 'k1_kernel'
    NSLOT = 8; LOOK = 6; SLOT = 16384
    CT = NSLOT * SLOT
    p.raw(header(name))
    p('s_cmp_ge_u32 s2, 240')
    p('s_cbranch_scc1 K1_END')
    stamp(p, 0)
    S = load_srds(p, ['wqkv', 'ws'], 84, 40)
    W, WS = S['wqkv'], S['ws']
    stamp(p, 1)
    ARAW = 0
    CONST = 160
    HF_ = 200
    TMP = 208
    TRA = 224
    VL = 232; VDMA = 233; VA = 234; VT = 235; VTID = 236
    MT = 240
    ACC = 0; WF = 64
    p(f'v_mov_b32 v{VTID}, v0')
    p(f'v_and_b32 v{VL}, 63, v0')
    p(f'v_lshrrev_b32 v{VT}, 6, v0')
    p(f'v_readfirstlane_b32 s4, v{VT}')
    p('s_and_b32 s5, s2, 7')
    p('s_lshr_b32 s6, s2, 3')
    p('s_and_b32 s7, s6, 1')
    p('s_lshl_b32 s5, s5, 1')
    p('s_add_u32 s5, s5, s7')
    p('s_lshr_b32 s6, s6, 1')
    p('s_lshl_b32 s7, s5, 2')
    p('s_add_u32 s7, s7, s4')
    MCS = 120
    mod_consts_issue(p, WS, 0, 640, MCS, 'mc')
    p('s_mul_i32 s8, s7, 40960')
    p(f's_add_u32 s8, s8, {XH}')
    p(f'v_lshlrev_b32 v{VA}, 4, v{VL}')
    p(f'v_lshrrev_b32 v{TMP}, 4, v{VL}')
    p(f'v_and_b32 v{TMP+1}, 15, v{VL}')
    p(f'v_lshlrev_b32 v{TMP+2}, 2, v{TMP}')
    p(f'v_xor_b32 v{TMP+1}, v{TMP+1}, v{TMP+2}')
    p(f'v_lshlrev_b32 v{TMP+1}, 4, v{TMP+1}')
    p(f'v_mul_u32_u24 v{TMP}, 3840, v{TMP}')
    p('s_mul_i32 s9, s4, 61440')
    p('s_lshl_b32 s10, s6, 8')
    p('s_add_u32 s9, s9, s10')
    p(f'v_add3_u32 v{VDMA}, v{TMP}, v{TMP+1}, s9')
    p('s_lshl_b32 s11, s4, 12')
    p(f'v_lshrrev_b32 v{TMP}, 5, v{VL}')
    p(f'v_bfe_u32 v{TMP+1}, v{VL}, 2, 2')
    p(f'v_lshl_add_u32 v{TMP}, v{TMP}, 3, v{TMP+1}')
    p(f'v_lshlrev_b32 v{TMP}, 8, v{TMP}')
    p(f'v_bfe_u32 v{TMP+2}, v{VL}, 4, 1')
    p(f'v_lshl_add_u32 v{TMP}, v{TMP+2}, 5, v{TMP}')
    p(f'v_and_b32 v{TMP+2}, 3, v{VL}')
    p(f'v_lshl_add_u32 v{TMP}, v{TMP+2}, 3, v{TMP}')
    for t in range(4):
        p(f'v_xor_b32 v{TMP+2}, {t}, v{TMP+1}')
        p(f'v_lshl_add_u32 v{TRA+t}, v{TMP+2}, 6, v{TMP}')
        p(f'v_add_u32 v{TRA+4+t}, 0x10000, v{TRA+t}')

    def issue_chunk(c):
        for fi in range(4):
            f = 4*c + fi
            p(f's_add_u32 s20, s8, {f*1024}')
            p(f'buffer_load_dwordx4 {vr(ARAW+4*f,4)}, v{VA}, {WS}, s20 offen', tag=f'c{c}')
        p(f's_add_u32 m0, s11, {(c % NSLOT)*SLOT}')
        for q in range(4):
            p(f's_mov_b32 s21, {(64*c + 4*q)*3840 - q*1024}')
            p(f'buffer_load_dwordx4 v{VDMA}, {W}, s21 offen offset:{q*1024} lds', tag=f'c{c}')

    for c in range(LOOK):
        issue_chunk(c)
    for i in range(64):
        p(f'v_accvgpr_write_b32 a{ACC+i}, 0')
    stamp(p, 2)
    mod_consts_finish(p, MCS, 'mc', CT)
    p('s_waitcnt lgkmcnt(0)')
    p('s_barrier')
    stamp(p, 3)
    mod_consts_read(p, f'v{TMP}', f'v{VL}', CT, CONST)

    def tr_reads(f):
        c, fi = divmod(f, 4)
        slot = c % NSLOT
        base = TRA + (4 if slot >= 4 else 0)
        off = (slot % 4) * SLOT + fi * 4096
        out = []
        for t in range(4):
            d = WF + (f & 1)*16 + 4*t
            out.append(lambda d=d, t=t: p(f'ds_read_b64_tr_b16 {ar(d,2)}, v{base+t} offset:{off}', tag=f'tr{f}'))
            out.append(lambda d=d, t=t: p(f'ds_read_b64_tr_b16 {ar(d+2,2)}, v{base+t} offset:{off+1024}', tag=f'tr{f}'))
        return out

    def transform(f):
        out = []
        cst = CONST + f
        for r in range(4):
            src = ARAW + 4*f + r
            out.append(lambda src=src, r=r: p(f'v_lshlrev_b32 v{TMP+2*r}, 16, v{src}'))
            out.append(lambda src=src, r=r: p(f'v_and_b32 v{TMP+2*r+1}, 0xffff0000, v{src}'))
        for e in range(8):
            out.append(lambda e=e: p(f'v_mul_f32_dpp v{TMP+e}, v{cst}, v{TMP+e} {DPP(e)}'))
        for e in range(8):
            out.append(lambda e=e: p(f'v_add_f32_dpp v{TMP+e}, v{cst}, v{TMP+e} {DPP(8+e)}'))
        for r in range(4):
            dst = HF_ + (f & 1)*4 + r
            out.append(lambda r=r, dst=dst: p(f'v_cvt_pk_bf16_f32 v{dst}, v{TMP+2*r}, v{TMP+2*r+1}'))
        return out

    def mainloop(isv):
        p.wait_vm('c0')
        p('s_barrier')
        stamp(p, 4)
        for th in tr_reads(0): th()
        p.wait_lg('ct')
        for th in transform(0): th()
        for f in range(40):
            p.wait_lg(f'tr{f}')
            fill = []
            if f + 1 < 40:
                if (f + 1) % 4 == 0:
                    c1 = (f + 1) // 4
                    p.wait_vm(f'c{c1}')
                    p('s_barrier')
                    if c1 - 1 + LOOK < 10:
                        issue_chunk(c1 - 1 + LOOK)
                fill = tr_reads(f + 1) + transform(f + 1)
            mf = []
            for t in range(4):
                w = ar(WF + (f & 1)*16 + 4*t, 4); h = vr(HF_ + (f & 1)*4, 4); a = ar(ACC + 16*t, 16)
                if isv:
                    mf.append(lambda w=w, h=h, a=a: p(f'v_mfma_f32_32x32x16_bf16 {a}, {h}, {w}, {a}'))
                else:
                    mf.append(lambda w=w, h=h, a=a: p(f'v_mfma_f32_32x32x16_bf16 {a}, {w}, {h}, {a}'))
            for th in interleave(mf, fill): th()
            if f in (7, 19, 31, 39): stamp(p, 5 + (7, 19, 31, 39).index(f))

    p('s_cmp_ge_u32 s6, 10')
    p('s_cbranch_scc1 K1_V')
    vm0, lg0 = list(p.vm), list(p.lg)
    mainloop(False)
    p('s_mul_i32 s20, s7, 81920')
    p('s_lshl_b32 s21, s6, 13')
    p('s_add_u32 s20, s20, s21')
    p(f's_add_u32 s20, s20, {QK}')
    p('s_add_u32 s21, s20, 4096')
    p(f'v_lshlrev_b32 v{VA}, 3, v{VL}')
    for t in range(4):
        for i in range(4):
            b = 8*(4*t + i)
            for j in range(4):
                p(f'v_accvgpr_read_b32 v{b+j}, a{ACC + 16*t + 4*i + j}')
            p(f'v_cvt_pk_bf16_f32 v{b+4}, v{b}, v{b+1}')
            p(f'v_cvt_pk_bf16_f32 v{b+5}, v{b+2}, v{b+3}')
            off = (8*t + 2*i)*256
            p(f'buffer_store_dwordx2 {vr(b+4,2)}, v{VA}, {WS}, s{20 + off//4096} offen offset:{off%4096}')
    stamp(p, 9)
    p('s_waitcnt vmcnt(0)')
    stamp(p, 10)
    stamp_flush(p, 11, WS, TMP, 1, 's4')
    p('s_endpgm')
    p.raw('K1_V:')
    p.vm, p.lg = vm0, lg0
    mainloop(True)
    p('s_mul_i32 s20, s7, 40960')
    p('s_sub_u32 s21, s6, 10')
    p('s_lshl_b32 s21, s21, 11')
    p('s_add_u32 s20, s20, s21')
    p(f's_add_u32 s20, s20, {VF}')
    p('s_add_u32 s21, s20, 20480')
    p(f'v_lshrrev_b32 v{TMP}, 5, v{VL}')
    p(f'v_mul_u32_u24 v{TMP}, 10240, v{TMP}')
    p(f'v_and_b32 v{TMP+1}, 31, v{VL}')
    p(f'v_lshl_add_u32 v{VA}, v{TMP+1}, 4, v{TMP}')
    for t in range(4):
        for m in range(2):
            b = 16*(2*t + m)
            for j in range(8):
                p(f'v_accvgpr_read_b32 v{b+j}, a{ACC + 16*t + 8*m + j}')
            for j in range(4):
                p(f'v_cvt_pk_bf16_f32 v{b+8+j}, v{b+2*j}, v{b+2*j+1}')
            p(f'buffer_store_dwordx4 {vr(b+8,4)}, v{VA}, {WS}, s{20+m} offen offset:{t*512}')
    stamp(p, 9)
    p('s_waitcnt vmcnt(0)')
    stamp(p, 10)
    stamp_flush(p, 11, WS, TMP, 1, 's4')
    p.raw('K1_END:')
    p('s_endpgm')
    return p, descriptor(name, 256, 96), f'; @launch kernel={name} grid=(240,1,1) block=(256,1,1) lds={CT + 5120}'


def gen_k2():
    p = Prog()
    name = 'k2_kernel'
    KB = 0; VB = 20480
    p.raw(header(name))
    p('s_cmp_ge_u32 s2, 256')
    p('s_cbranch_scc1 K2_END')
    stamp(p, 0)
    S = load_srds(p, ['ws'], 84, 40)
    WS = S['ws']
    SC = 0
    MK0 = 144; MK8 = 160
    OA = 176
    QF = 192
    KF = 200
    VFr = 216
    VL = 224; VM = 225; VH = 226; T0 = 228; T1 = 229; T2 = 230; T3 = 231; KA_ = 232; VA_ = 233; MX = 234; QA = 235
    ONE = 236
    p(f'v_and_b32 v{VL}, 63, v0')
    p(f'v_lshrrev_b32 v{T0}, 6, v0')
    p(f'v_readfirstlane_b32 s4, v{T0}')
    p('s_and_b32 s5, s2, 7')
    p('s_lshr_b32 s6, s2, 3')
    p(f'v_and_b32 v{VM}, 31, v{VL}')
    p(f'v_lshrrev_b32 v{VH}, 5, v{VL}')
    p(f'v_lshlrev_b32 v{T0}, 4, v{VL}')
    p(f'v_mul_u32_u24 v{T1}, 10240, v{VH}')
    p(f'v_lshl_add_u32 v{T1}, v{VM}, 4, v{T1}')
    p('s_mul_i32 s8, s6, 1280')
    p(f's_add_u32 s8, s8, {QK + 160*256}')
    p('s_mul_i32 s9, s6, 320')
    p(f's_add_u32 s9, s9, {VF}')
    p('s_lshl_b32 s10, s5, 3')
    p('s_lshl_b32 s11, s4, 1')
    p('s_add_u32 s10, s10, s11')
    p(f'v_cmp_gt_u32 s[30:31], 20, v{VM}')
    p(f'v_cmp_gt_u32 s[32:33], 16, v{VL}')
    for si in range(2):
        p(f's_add_u32 s20, s10, {si}')
        p('s_sub_i32 s20, s20, 8')
        p('s_max_i32 s20, s20, 0')
        p('s_mul_i32 s21, s20, 81920')
        p('s_add_u32 s21, s21, s8')
        p('s_mul_i32 s22, s20, 40960')
        p('s_add_u32 s22, s22, s9')
        p(f's_add_u32 s23, s22, {20480 - 1024}')
        p(f's_add_u32 s24, s11, {si}')
        p('s_mul_i32 s25, s24, 1280')
        p(f's_add_u32 m0, s25, {KB}')
        p(f'buffer_load_dwordx4 v{T0}, {WS}, s21 offen lds', tag='kv')
        p('s_mov_b64 exec, s[32:33]')
        p(f'buffer_load_dwordx4 v{T0}, {WS}, s21 offen offset:1024 lds', tag='kv')
        p('s_mov_b64 exec, s[30:31]')
        p('s_lshl_b32 s25, s24, 11')
        p(f's_add_u32 m0, s25, {VB}')
        p(f'buffer_load_dwordx4 v{T1}, {WS}, s22 offen lds', tag='kv')
        p(f'buffer_load_dwordx4 v{T1}, {WS}, s23 offen offset:1024 lds', tag='kv')
        p('s_mov_b64 exec, -1')
    p('s_lshl_b32 s26, s5, 3')
    p('s_add_u32 s26, s26, s4')
    p('s_mul_i32 s27, s26, 81920')
    p('s_mul_i32 s28, s6, 1280')
    p('s_add_u32 s27, s27, s28')
    p(f's_add_u32 s27, s27, {QK}')
    p(f'v_lshlrev_b32 v{QA}, 9, v{VH}')
    p(f'v_lshl_add_u32 v{QA}, v{VM}, 3, v{QA}')
    p(f'v_lshlrev_b32 v{T2}, 3, v{VM}')
    p(f'buffer_load_dwordx2 {vr(QF,2)}, v{QA}, {WS}, s27 offen', tag='q')
    p(f'buffer_load_dwordx2 {vr(QF+2,2)}, v{QA}, {WS}, s27 offen offset:256', tag='q')
    p(f'buffer_load_dwordx2 {vr(QF+4,2)}, v{T2}, {WS}, s27 offen offset:1024', tag='q')
    p(f'v_mov_b32 v{T2}, 0x3f803f80')
    p(f'v_cmp_eq_u32 vcc, 20, v{VM}')
    p(f'v_cndmask_b32 v{ONE}, 0, v{T2}, vcc')
    for i in range(1, 4): p(f'v_mov_b32 v{ONE+i}, v{ONE}')
    p('s_lshl_b32 s25, s4, 12')
    p(f's_add_u32 s25, s25, {VB}')
    p(f'v_add_u32 v{T3}, s25, v{T0}')
    p('s_not_b64 exec, s[30:31]')
    for i in range(4):
        p(f'ds_write_b128 v{T3}, {vr(ONE,4)} offset:{i*1024}')
    p('s_mov_b64 exec, -1')
    p(f'v_mov_b32 v{T2}, {f32hex(-1e30)}')
    p(f'v_lshlrev_b32 v{T3}, 2, v{VH}')
    p(f'v_sub_u32 v{T3}, v{VM}, v{T3}')
    for j in range(16):
        b0 = (j & 3) + 8*(j >> 2)
        p(f'v_cmp_le_i32 vcc, {b0}, v{T3}')
        p(f'v_cndmask_b32 v{MK8+j}, v{T2}, 0, vcc')
        p(f'v_cndmask_b32 v{MK0+j}, 0, v{T2}, vcc')
    p('s_mul_i32 s25, s4, 1280')
    p(f'v_add_u32 v{KA_}, s25, v{QA}')
    p(f'v_lshlrev_b32 v{T3}, 3, v{VM}')
    p(f'v_add_u32 v{T3}, s25, v{T3}')
    p('s_lshl_b32 s25, s4, 11')
    p(f's_add_u32 s25, s25, {VB}')
    p(f'v_add_u32 v{VA_}, s25, v{T0}')
    p.wait_vm('q')
    p(f'v_cmp_eq_u32 vcc, 0, v{VH}')
    p(f'v_cndmask_b32 v{QF+4}, 0, v{QF+4}, vcc')
    p(f'v_cndmask_b32 v{QF+5}, 0, v{QF+5}, vcc')
    p('s_waitcnt vmcnt(0) lgkmcnt(0)')
    p('s_barrier')
    stamp(p, 1)
    def kread(i):
        b = KF + 8*(i & 1)
        p(f'ds_read_b64 {vr(b,2)}, v{KA_} offset:{KB + i*1280}', tag=f'k{i}')
        p(f'ds_read_b64 {vr(b+2,2)}, v{KA_} offset:{KB + i*1280 + 256}', tag=f'k{i}')
        p(f'ds_read_b64 {vr(b+4,2)}, v{T3} offset:{KB + i*1280 + 1024}', tag=f'k{i}')
    kread(0)
    for i in range(9):
        if i + 1 < 9: kread(i + 1)
        p.wait_lg(f'k{i}')
        b = KF + 8*(i & 1)
        c = vr(MK0, 16) if i == 0 else vr(MK8, 16) if i == 8 else '0'
        d = vr(SC + 16*i, 16)
        p(f'v_mfma_f32_32x32x16_bf16 {d}, {vr(b,4)}, {vr(QF,4)}, {c}')
        p(f'v_mfma_f32_32x32x8_bf16 {d}, {vr(b+4,2)}, {vr(QF+4,2)}, {d}')
    p('s_cmp_lg_u32 s5, 0')
    p('s_cbranch_scc1 K2_NOFIX')
    p('s_nop 15')
    for i in range(8):
        p(f's_cmp_ge_u32 s4, {8 - i}')
        p(f's_cbranch_scc1 K2_NOFIX')
        for j in range(16):
            p(f'v_mov_b32 v{SC + 16*i + j}, v{T2}')
    p.raw('K2_NOFIX:')
    p('s_nop 15')
    p(f'v_max3_f32 v{MX}, v0, v1, v2')
    p(f'v_max3_f32 v{T0}, v3, v4, v5')
    idx = 6
    acc = [MX, T0]
    k = 0
    while idx < 144:
        a = acc[k & 1]
        p(f'v_max3_f32 v{a}, v{a}, v{idx}, v{idx+1}')
        idx += 2; k += 1
    p(f'v_max_f32 v{MX}, v{MX}, v{T0}')
    p(f'v_mov_b32 v{T0}, v{MX}')
    p(f'v_permlane32_swap_b32 v{MX}, v{T0}')
    p(f'v_max_f32 v{MX}, v{MX}, v{T0}')
    cs = 20 ** -0.5 * 1.4426950408889634
    p(f's_mov_b32 s29, {f32hex(cs)}')
    p(f'v_mul_f32 v{MX}, s29, v{MX}')
    stamp(p, 2)
    def vread(i, m):
        b = VFr + 4*m
        p(f'ds_read_b128 {vr(b,4)}, v{VA_} offset:{i*2048 + m*1024}', tag=f'v{i}_{m}')
    for i in range(9):
        for m in range(2):
            vread(i, m)
            b = SC + 16*i + 8*m
            for j in range(8):
                p(f'v_fma_f32 v{b+j}, v{b+j}, s29, -v{MX}')
            for j in range(8):
                p(f'v_exp_f32 v{b+j}, v{b+j}')
            for j in range(4):
                p(f'v_cvt_pk_bf16_f32 v{b+j}, v{b+2*j}, v{b+2*j+1}')
            p.wait_lg(f'v{i}_{m}')
            c = '0' if (i == 0 and m == 0) else vr(OA, 16)
            p(f'v_mfma_f32_32x32x16_bf16 {vr(OA,16)}, {vr(VFr+4*m,4)}, {vr(b,4)}, {c}')
    stamp(p, 3)
    p(f'v_mov_b32 v{T0}, v{OA+8}')
    p(f'v_mov_b32 v{T1}, v{OA+8}')
    p(f'v_permlane32_swap_b32 v{T0}, v{T1}')
    p(f'v_rcp_f32 v{T1}, v{T1}')
    for j in range(12):
        p(f'v_mul_f32 v{OA+j}, v{OA+j}, v{T1}')
    for jg in range(3):
        p(f'v_cvt_pk_bf16_f32 v{2*jg}, v{OA+4*jg}, v{OA+4*jg+1}')
        p(f'v_cvt_pk_bf16_f32 v{2*jg+1}, v{OA+4*jg+2}, v{OA+4*jg+3}')
    p('s_mul_i32 s27, s26, 40960')
    p(f's_add_u32 s27, s27, {OF}')
    p(f'v_lshrrev_b32 v{T0}, 4, v{VM}')
    p(f'v_mul_u32_u24 v{T0}, 20480, v{T0}')
    p(f'v_and_b32 v{T1}, 15, v{VM}')
    p(f'v_lshl_add_u32 v{T0}, v{T1}, 4, v{T0}')
    p('s_mul_i32 s28, s6, 5')
    for jg in range(3):
        p(f's_add_u32 s20, s28, {2*jg}')
        p(f'v_add_u32 v{T1}, s20, v{VH}')
        p(f'v_lshrrev_b32 v{T2}, 3, v{T1}')
        p(f'v_lshl_add_u32 v{T3}, v{T2}, 10, v{T0}')
        p(f'v_bfe_u32 v{T2}, v{T1}, 2, 1')
        p(f'v_lshl_add_u32 v{T3}, v{T2}, 9, v{T3}')
        p(f'v_and_b32 v{T2}, 1, v{T1}')
        p(f'v_lshl_add_u32 v{T3}, v{T2}, 8, v{T3}')
        p(f'v_bfe_u32 v{T2}, v{T1}, 1, 1')
        p(f'v_lshl_add_u32 v{16+jg}, v{T2}, 3, v{T3}')
        if jg == 2:
            p('s_mov_b32 exec_hi, 0')
        p(f'buffer_store_dwordx2 {vr(2*jg,2)}, v{16+jg}, {WS}, s27 offen')
    p('s_mov_b64 exec, -1')
    stamp(p, 4)
    stamp_flush(p, 5, WS, T0, 2, 's4')
    p.raw('K2_END:')
    p('s_endpgm')
    return p, descriptor(name, 240, 0), f'; @launch kernel={name} grid=(256,1,1) block=(512,1,1) lds={VB + 32768}'


def gen_k35(which):
    p = Prog()
    name = f'k{which}_kernel'
    L = f'K{which}'
    NF = 5 if which == 3 else 12
    FTOT = 20 if which == 3 else 48
    ABASE = OF if which == 3 else HF
    wname = 'wo' if which == 3 else 'wd'
    GCOL = 1280 if which == 3 else 3200
    RING = 5 if which == 3 else 7
    ARING = 5 if which == 3 else 7
    WLDS = RING * 5120
    p.raw(header(name))
    p('s_cmp_ge_u32 s2, 256')
    p(f's_cbranch_scc1 {L}_END')
    stamp(p, 0)
    names = [wname, 'ws', 'x' if which == 3 else 'out']
    S = load_srds(p, names, 84, 40)
    W, WS, XO = S[wname], S['ws'], S[names[2]]
    AR = 0
    WFr = 112
    GA = 152
    XR = 232
    DM = 242
    VL = 247; VA = 248; TRA = 249; T0 = 250; T1 = 251; T2 = 252; T3 = 253; VG = 254; VM = 255
    ACC = 0
    p(f'v_and_b32 v{VL}, 63, v0')
    p(f'v_lshrrev_b32 v{T0}, 6, v0')
    p(f'v_readfirstlane_b32 s4, v{T0}')
    p('s_and_b32 s5, s2, 7')
    p('s_lshr_b32 s6, s2, 3')
    p('s_and_b32 s7, s6, 3')
    p('s_lshl_b32 s5, s5, 2')
    p('s_add_u32 s5, s5, s7')
    p('s_lshr_b32 s6, s6, 2')
    p(f'v_and_b32 v{VM}, 15, v{VL}')
    p(f'v_lshrrev_b32 v{VG}, 4, v{VL}')
    p(f's_mul_i32 s8, s5, {4*FTOT*1024}')
    p(f's_mul_i32 s9, s4, {NF*1024}')
    p('s_add_u32 s8, s8, s9')
    p(f's_add_u32 s8, s8, {ABASE}')
    p(f'v_lshlrev_b32 v{VA}, 4, v{VL}')
    p('s_mul_i32 s9, s6, 160')
    p(f's_mul_i32 s10, s4, {32*NF*1280}')
    p('s_add_u32 s9, s9, s10')
    for i in range(5):
        p(f'v_add_u32 v{T0}, {64*i}, v{VL}')
        p(f'v_mul_u32_u24 v{T1}, 6554, v{T0}')
        p(f'v_lshrrev_b32 v{T1}, 16, v{T1}')
        p(f'v_mul_u32_u24 v{T2}, 10, v{T1}')
        p(f'v_sub_u32 v{T2}, v{T0}, v{T2}')
        p(f'v_mul_u32_u24 v{T1}, 1280, v{T1}')
        p(f'v_lshlrev_b32 v{T2}, 4, v{T2}')
        p(f'v_add3_u32 v{DM+i}, v{T1}, v{T2}, s9')
    p(f's_mul_i32 s11, s4, {WLDS}')
    p(f'v_lshrrev_b32 v{T0}, 1, v{VG}')
    p(f'v_lshlrev_b32 v{T0}, 4, v{T0}')
    p(f'v_and_b32 v{T1}, 1, v{VG}')
    p(f'v_lshl_add_u32 v{T0}, v{T1}, 2, v{T0}')
    p(f'v_bfe_u32 v{T1}, v{VL}, 2, 2')
    p(f'v_add_u32 v{T0}, v{T0}, v{T1}')
    p(f'v_mul_u32_u24 v{T0}, 160, v{T0}')
    p(f'v_and_b32 v{T1}, 3, v{VL}')
    p(f'v_lshl_add_u32 v{T0}, v{T1}, 3, v{T0}')
    p(f'v_add_u32 v{TRA}, s11, v{T0}')

    def issue(ff):
        for mi in range(4):
            p(f's_add_u32 s20, s8, {(mi*FTOT + ff)*1024}')
            p(f'buffer_load_dwordx4 {vr(AR + (ff % ARING)*16 + 4*mi, 4)}, v{VA}, {WS}, s20 offen', tag=f's{ff}')
        p(f's_mov_b32 s21, {ff*32*1280}')
        for i in range(5):
            p(f's_add_u32 m0, s11, {(ff % RING)*5120 + i*1024}')
            p(f'buffer_load_dwordx4 v{DM+i}, {W}, s21 offen lds', tag=f's{ff}')

    PRE = min(NF, 6)
    for ff in range(PRE):
        issue(ff)
    for i in range(80):
        p(f'v_accvgpr_write_b32 a{ACC+i}, 0')
    stamp(p, 1)

    def tr_reads(ff):
        out = []
        for t in range(5):
            d = WFr + (ff & 1)*20 + 4*t
            off = (ff % RING)*5120 + t*32
            out.append(lambda d=d, off=off: p(f'ds_read_b64_tr_b16 {vr(d,2)}, v{TRA} offset:{off}', tag=f'tr{ff}'))
            out.append(lambda d=d, off=off: p(f'ds_read_b64_tr_b16 {vr(d+2,2)}, v{TRA} offset:{off + 8*160}', tag=f'tr{ff}'))
        return out

    def epi_loads():
        p('s_mul_i32 s22, s6, 320')
        p(f'v_lshlrev_b32 v{T0}, 4, v{VG}')
        for ks in range(4):
            p(f's_add_u32 s23, s22, {MODP + ks*15360 + GCOL*4}')
            for t in range(5):
                p(f'buffer_load_dwordx4 {vr(GA + 20*ks + 4*t, 4)}, v{T0}, {WS}, s23 offen offset:{t*64}', tag='ga')
        p('s_lshl_b32 s24, s5, 6')
        p('s_lshl_b32 s25, s4, 4')
        p('s_add_u32 s24, s24, s25')
        if which == 3:
            p(f'v_add_u32 v{T1}, s24, v{VM}')
            p(f'v_mul_u32_u24 v{T1}, 1280, v{T1}')
            p(f'v_lshl_add_u32 v{T1}, v{VG}, 3, v{T1}')
            p('s_mul_i32 s25, s6, 160')
            for t in range(5):
                p(f'buffer_load_dwordx2 {vr(XR + 2*t, 2)}, v{T1}, {XO}, s25 offen offset:{t*32}', tag='xr')
        p('s_lshr_b32 s26, s24, 5')
        p('s_mul_i32 s26, s26, 40960')
        p('s_mul_i32 s27, s6, 5120')
        p('s_add_u32 s26, s26, s27')
        p(f's_add_u32 s26, s26, {X1F}')
        p('s_add_u32 s27, s26, 4096')
        p('s_and_b32 s28, s24, 16')
        p(f'v_add_u32 v{T2}, s28, v{VM}')
        p(f'v_lshrrev_b32 v{T3}, 1, v{VG}')
        p(f'v_lshl_add_u32 v{T2}, v{T3}, 5, v{T2}')
        p(f'v_lshlrev_b32 v{T2}, 4, v{T2}')
        p(f'v_and_b32 v{T3}, 1, v{VG}')
        p(f'v_lshl_add_u32 v{T2}, v{T3}, 3, v{T2}')
        if which == 5:
            for t in range(5):
                p(f'buffer_load_dwordx2 {vr(XR + 2*t, 2)}, v{T2}, {WS}, s{26 + t//4} offen offset:{(t%4)*1024}', tag='xr')

    p.wait_vm('s0')
    stamp(p, 2)
    for th in tr_reads(0): th()
    for ff in range(NF):
        p.wait_lg(f'tr{ff}')
        fill = []
        if ff + 1 < NF:
            p.wait_vm(f's{ff+1}')
            fill = tr_reads(ff + 1)
        mf = []
        for mi in range(4):
            for t in range(5):
                w = vr(WFr + (ff & 1)*20 + 4*t, 4); a = vr(AR + (ff % ARING)*16 + 4*mi, 4); c = ar(ACC + 20*mi + 4*t, 4)
                mf.append(lambda w=w, a=a, c=c: p(f'v_mfma_f32_16x16x32_bf16 {c}, {w}, {a}, {c}'))
        for th in interleave(mf[:12], fill): th()
        for th in mf[12:]: th()
        if ff + PRE < NF:
            issue(ff + PRE)
        if ff == max(NF - PRE - 1, 0) + (1 if NF > PRE else 0) or (NF <= PRE and ff == 0):
            pass
        if ff == (NF - PRE if NF > PRE else 0):
            epi_loads()
    stamp(p, 3)
    p('s_barrier')
    p('s_mul_i32 s20, s4, 5120')
    p(f'v_add_u32 v{T0}, s20, v{VA}')
    p(f'v_add_u32 v{T1}, 40960, v{T0}')
    p('s_nop 7')
    for mi in range(4):
        p(f's_cmp_eq_u32 s4, {mi}')
        p(f's_cbranch_scc1 {L}_SKIP{mi}')
        for t in range(5):
            b = 20*mi + 4*t
            for j in range(4):
                p(f'v_accvgpr_read_b32 v{b+j}, a{ACC+b+j}')
            p(f'ds_write_b128 v{T0 + mi//2}, {vr(b,4)} offset:{(mi%2)*20480 + t*1024}')
        p.raw(f'{L}_SKIP{mi}:')
    for mi in range(4):
        p(f's_cmp_lg_u32 s4, {mi}')
        p(f's_cbranch_scc1 {L}_OWN{mi}')
        for b in range(20):
            p(f'v_accvgpr_read_b32 v{80+b}, a{ACC+20*mi+b}')
        p.raw(f'{L}_OWN{mi}:')
    p('s_waitcnt lgkmcnt(0)')
    p('s_barrier')
    p('s_mul_i32 s20, s4, 20480')
    p(f'v_add_u32 v{T0}, s20, v{VA}')
    for k in range(1, 4):
        p(f's_add_u32 s21, s4, {k}')
        p('s_and_b32 s21, s21, 3')
        p('s_mul_i32 s21, s21, 5120')
        p(f'v_add_u32 v{T1}, s21, v{T0}')
        for t in range(5):
            p(f'ds_read_b128 {vr(20*(k-1) + 4*t, 4)}, v{T1} offset:{t*1024}', tag=f'r{k}')
    p.wait_vm('ga')
    for b in range(20):
        p(f'v_add_f32 v{GA+b}, v{GA+b}, v{GA+20+b}')
        p(f'v_add_f32 v{GA+40+b}, v{GA+40+b}, v{GA+60+b}')
        p(f'v_add_f32 v{GA+b}, v{GA+b}, v{GA+40+b}')
        bf16_round(p, f'v{GA+b}', f'v{GA+b}')
    for k in range(1, 4):
        p.wait_lg(f'r{k}')
        for b in range(20):
            p(f'v_add_f32 v{80+b}, v{80+b}, v{20*(k-1)+b}')
    p.wait_vm('xr')
    if which == 3:
        p(f'v_mov_b32 v100, 0')
        p(f'v_mov_b32 v101, 0')
    if which == 5:
        p(f'v_add_u32 v{T1}, s24, v{VM}')
        p(f'v_mul_u32_u24 v{T1}, 1280, v{T1}')
        p(f'v_lshl_add_u32 v{T1}, v{VG}, 3, v{T1}')
        p('s_mul_i32 s25, s6, 160')
    for t in range(5):
        for pr in range(2):
            a = 80 + 4*t + 2*pr; g = GA + 4*t + 2*pr; x = XR + 2*t + pr
            p(f'v_cvt_pk_bf16_f32 v0, v{a}, v{a+1}')
            p(f'v_lshlrev_b32 v1, 16, v0')
            p(f'v_and_b32 v2, 0xffff0000, v0')
            p(f'v_mul_f32 v1, v1, v{g}')
            p(f'v_mul_f32 v2, v2, v{g+1}')
            p(f'v_cvt_pk_bf16_f32 v0, v1, v2')
            p(f'v_lshlrev_b32 v1, 16, v0')
            p(f'v_and_b32 v2, 0xffff0000, v0')
            p(f'v_lshlrev_b32 v3, 16, v{x}')
            p(f'v_and_b32 v4, 0xffff0000, v{x}')
            p(f'v_add_f32 v1, v1, v3')
            p(f'v_add_f32 v2, v2, v4')
            p(f'v_cvt_pk_bf16_f32 v{x}, v1, v2')
            if which == 3:
                p(f'v_lshlrev_b32 v1, 16, v{x}')
                p(f'v_and_b32 v2, 0xffff0000, v{x}')
                p(f'v_add_f32 v100, v100, v1')
                p(f'v_fmac_f32 v101, v1, v1')
                p(f'v_add_f32 v100, v100, v2')
                p(f'v_fmac_f32 v101, v2, v2')
        if which == 3:
            p(f'buffer_store_dwordx2 {vr(XR+2*t,2)}, v{T2}, {WS}, s{26 + t//4} offen offset:{(t%4)*1024}')
        else:
            p(f'buffer_store_dwordx2 {vr(XR+2*t,2)}, v{T1}, {XO}, s25 offen offset:{t*32}')
    if which == 3:
        for v in ('v100', 'v101'):
            p(f'v_mov_b32 v102, {v}')
            p(f'v_permlane16_swap_b32 {v}, v102')
            p(f'v_add_f32 {v}, {v}, v102')
            half_sum(p, v, 'v102')
        p(f'v_add_u32 v{T1}, s24, v{VM}')
        p(f'v_lshlrev_b32 v{T1}, 6, v{T1}')
        p('s_lshl_b32 s25, s6, 3')
        p(f's_add_u32 s25, s25, {ST}')
        p('s_mov_b64 exec, 0xffff')
        p(f'buffer_store_dwordx2 v[100:101], v{T1}, {WS}, s25 offen')
        p('s_mov_b64 exec, -1')
    stamp(p, 4)
    stamp_flush(p, 5, WS, T0, which, 's4')
    p.raw(f'{L}_END:')
    p('s_endpgm')
    lds = max(4*WLDS, 81920)
    return p, descriptor(name, 256, 80), f'; @launch kernel={name} grid=(256,1,1) block=(256,1,1) lds={lds}'


def gen_k4():
    p = Prog()
    name = 'k4_kernel'
    NSLOT = 6; LOOK = 5; SLOT = 24576
    CT = NSLOT * SLOT
    p.raw(header(name))
    p('s_cmp_ge_u32 s2, 256')
    p('s_cbranch_scc1 K4_END')
    stamp(p, 0)
    S = load_srds(p, ['wg', 'wu', 'ws'], 84, 40)
    WG_, WU_, WS = S['wg'], S['wu'], S['ws']
    ARAW = 0; CONST = 160; HF_ = 200; TMP = 208; TRA = 224
    VL = 232; VA = 234; VT = 235; DM = 236
    RS = 240; NM = 241
    ACC = 0; WF = 96
    p(f'v_and_b32 v{VL}, 63, v0')
    p(f'v_lshrrev_b32 v{VT}, 6, v0')
    p(f'v_readfirstlane_b32 s4, v{VT}')
    p('s_and_b32 s5, s2, 7')
    p('s_lshr_b32 s6, s2, 3')
    p('s_and_b32 s7, s6, 1')
    p('s_lshl_b32 s5, s5, 1')
    p('s_add_u32 s5, s5, s7')
    p('s_lshr_b32 s6, s6, 1')
    p('s_lshl_b32 s7, s5, 2')
    p('s_add_u32 s7, s7, s4')
    MCS = 120
    mod_consts_issue(p, WS, 1920, 2560, MCS, 'mc')
    p(f'v_and_b32 v{TMP}, 31, v{VL}')
    p(f'v_lshlrev_b32 v{TMP}, 6, v{TMP}')
    p('s_lshl_b32 s8, s7, 11')
    p(f's_add_u32 s8, s8, {ST}')
    for i in range(4):
        p(f'buffer_load_dwordx4 {vr(100+4*i,4)}, v{TMP}, {WS}, s8 offen offset:{16*i}', tag='st')
    p('s_mul_i32 s8, s7, 40960')
    p(f's_add_u32 s8, s8, {X1F}')
    p(f'v_lshlrev_b32 v{VA}, 4, v{VL}')
    p('s_mul_i32 s9, s4, 49152')
    p('s_mul_i32 s10, s6, 192')
    p('s_add_u32 s9, s9, s10')
    for i in range(3):
        p(f'v_add_u32 v{TMP}, {64*i}, v{VL}')
        p(f'v_mul_u32_u24 v{TMP+1}, 5462, v{TMP}')
        p(f'v_lshrrev_b32 v{TMP+1}, 16, v{TMP+1}')
        p(f'v_mul_u32_u24 v{TMP+2}, 12, v{TMP+1}')
        p(f'v_sub_u32 v{TMP+2}, v{TMP}, v{TMP+2}')
        p(f'v_mul_u32_u24 v{TMP+1}, 3072, v{TMP+1}')
        p(f'v_lshlrev_b32 v{TMP+2}, 4, v{TMP+2}')
        p(f'v_add3_u32 v{DM+i}, v{TMP+1}, v{TMP+2}, s9')
    p('s_mul_i32 s11, s4, 3072')
    p(f'v_lshrrev_b32 v{TMP}, 5, v{VL}')
    p(f'v_bfe_u32 v{TMP+1}, v{VL}, 2, 2')
    p(f'v_lshl_add_u32 v{TMP}, v{TMP}, 3, v{TMP+1}')
    p(f'v_mul_u32_u24 v{TMP}, 192, v{TMP}')
    p(f'v_bfe_u32 v{TMP+2}, v{VL}, 4, 1')
    p(f'v_lshl_add_u32 v{TMP}, v{TMP+2}, 5, v{TMP}')
    p(f'v_and_b32 v{TMP+2}, 3, v{VL}')
    p(f'v_lshl_add_u32 v{TRA}, v{TMP+2}, 3, v{TMP}')
    p(f'v_add_u32 v{TRA+1}, {2*SLOT}, v{TRA}')
    p(f'v_add_u32 v{TRA+2}, {4*SLOT}, v{TRA}')

    def issue_chunk(c):
        for fi in range(4):
            f = 4*c + fi
            p(f's_add_u32 s20, s8, {f*1024}')
            p(f'buffer_load_dwordx4 {vr(ARAW+4*f,4)}, v{VA}, {WS}, s20 offen', tag=f'c{c}')
        for im, Wm in enumerate((WG_, WU_)):
            p(f's_add_u32 m0, s11, {(c % NSLOT)*SLOT + im*12288}')
            for i in range(3):
                p(f's_mov_b32 s21, {64*c*3072 - i*1024 + (1024*3 if False else 0)}' if (64*c*3072 - i*1024) >= 0 else f's_mov_b32 s21, 0')
                if 64*c*3072 - i*1024 >= 0:
                    p(f'buffer_load_dwordx4 v{DM+i}, {Wm}, s21 offen offset:{i*1024} lds', tag=f'c{c}')
                else:
                    p(f's_add_u32 m0, s11, {(c % NSLOT)*SLOT + im*12288 + i*1024}')
                    p(f'buffer_load_dwordx4 v{DM+i}, {Wm}, s21 offen lds', tag=f'c{c}')

    for c in range(LOOK):
        issue_chunk(c)
    for i in range(96):
        p(f'v_accvgpr_write_b32 a{ACC+i}, 0')
    stamp(p, 1)
    mod_consts_finish(p, MCS, 'mc', CT)
    p.wait_vm('st')
    for i in range(1, 8):
        p(f'v_add_f32 v100, v100, v{100+2*i}')
        p(f'v_add_f32 v101, v101, v{101+2*i}')
    ln_stats(p, 'v100', 'v101', f'v{TMP}')
    p(f'v_mov_b32 v{RS}, v101')
    p(f'v_mul_f32 v{NM}, v100, v101')
    p(f'v_sub_f32 v{NM}, 0, v{NM}')
    p('s_waitcnt lgkmcnt(0)')
    p('s_barrier')
    stamp(p, 2)
    mod_consts_read(p, f'v{TMP}', f'v{VL}', CT, CONST)

    def tr_reads(f):
        c, fi = divmod(f, 4)
        slot = c % NSLOT
        base = TRA + slot // 2
        off = (slot % 2) * SLOT + fi * 3072
        out = []
        for t in range(6):
            d = WF + (f & 1)*24 + 4*t
            o = off + (t // 3)*12288 + (t % 3)*64
            out.append(lambda d=d, o=o: p(f'ds_read_b64_tr_b16 {ar(d,2)}, v{base} offset:{o}', tag=f'tr{f}'))
            out.append(lambda d=d, o=o: p(f'ds_read_b64_tr_b16 {ar(d+2,2)}, v{base} offset:{o+768}', tag=f'tr{f}'))
        return out

    def transform(f):
        out = []
        cst = CONST + f
        for r in range(4):
            src = ARAW + 4*f + r
            out.append(lambda src=src, r=r: p(f'v_lshlrev_b32 v{TMP+2*r}, 16, v{src}'))
            out.append(lambda src=src, r=r: p(f'v_and_b32 v{TMP+2*r+1}, 0xffff0000, v{src}'))
        for e in range(8):
            out.append(lambda e=e: p(f'v_fma_f32 v{TMP+e}, v{TMP+e}, v{RS}, v{NM}'))
        for e in range(8):
            out.append(lambda e=e: p(f'v_mul_f32_dpp v{TMP+e}, v{cst}, v{TMP+e} {DPP(e)}'))
        for e in range(8):
            out.append(lambda e=e: p(f'v_add_f32_dpp v{TMP+e}, v{cst}, v{TMP+e} {DPP(8+e)}'))
        for r in range(4):
            dst = HF_ + (f & 1)*4 + r
            out.append(lambda r=r, dst=dst: p(f'v_cvt_pk_bf16_f32 v{dst}, v{TMP+2*r}, v{TMP+2*r+1}'))
        return out

    p.wait_vm('c0')
    p('s_barrier')
    stamp(p, 3)
    for th in tr_reads(0): th()
    p.wait_lg('ct')
    for th in transform(0): th()
    for f in range(40):
        p.wait_lg(f'tr{f}')
        fill = []
        if f + 1 < 40:
            if (f + 1) % 4 == 0:
                c1 = (f + 1) // 4
                p.wait_vm(f'c{c1}')
                p('s_barrier')
                if c1 - 1 + LOOK < 10:
                    issue_chunk(c1 - 1 + LOOK)
            fill = tr_reads(f + 1) + transform(f + 1)
        mf = []
        for t in range(6):
            w = ar(WF + (f & 1)*24 + 4*t, 4); h = vr(HF_ + (f & 1)*4, 4); a = ar(ACC + 16*t, 16)
            mf.append(lambda w=w, h=h, a=a: p(f'v_mfma_f32_32x32x16_bf16 {a}, {w}, {h}, {a}'))
        for th in interleave(mf, fill): th()
    stamp(p, 4)
    p('s_mul_i32 s20, s7, 98304')
    p('s_mul_i32 s21, s6, 3072')
    p('s_add_u32 s20, s20, s21')
    p(f's_add_u32 s20, s20, {HF}')
    p(f'v_bfe_u32 v{TMP}, v{VL}, 4, 1')
    p(f'v_mul_u32_u24 v{TMP}, 49152, v{TMP}')
    p(f'v_and_b32 v{TMP+1}, 15, v{VL}')
    p(f'v_lshl_add_u32 v{TMP}, v{TMP+1}, 4, v{TMP}')
    p(f'v_lshrrev_b32 v{TMP+1}, 5, v{VL}')
    p(f'v_lshl_add_u32 v{VA}, v{TMP+1}, 8, v{TMP}')
    p(f's_mov_b32 s22, {f32hex(-1.4426950408889634)}')
    for t in range(3):
        for jh in range(2):
            b = 32*(2*t + jh) % 192
            G_ = b; U_ = b + 8; E_ = b + 16; O_ = b + 24
            for e in range(8):
                p(f'v_accvgpr_read_b32 v{G_+e}, a{ACC + 16*t + 8*jh + e}')
                p(f'v_accvgpr_read_b32 v{U_+e}, a{ACC + 48 + 16*t + 8*jh + e}')
            for e in range(0, 8, 2):
                p(f'v_cvt_pk_bf16_f32 v{E_}, v{G_+e}, v{G_+e+1}')
                p(f'v_cvt_pk_bf16_f32 v{E_+1}, v{U_+e}, v{U_+e+1}')
                p(f'v_lshlrev_b32 v{G_+e}, 16, v{E_}')
                p(f'v_and_b32 v{G_+e+1}, 0xffff0000, v{E_}')
                p(f'v_lshlrev_b32 v{U_+e}, 16, v{E_+1}')
                p(f'v_and_b32 v{U_+e+1}, 0xffff0000, v{E_+1}')
            for e in range(8): p(f'v_mul_f32 v{E_+e}, s22, v{G_+e}')
            for e in range(8): p(f'v_exp_f32 v{E_+e}, v{E_+e}')
            for e in range(8): p(f'v_add_f32 v{E_+e}, 1.0, v{E_+e}')
            for e in range(8): p(f'v_rcp_f32 v{E_+e}, v{E_+e}')
            for e in range(8): p(f'v_mul_f32 v{G_+e}, v{G_+e}, v{E_+e}')
            for e in range(0, 8, 2):
                p(f'v_cvt_pk_bf16_f32 v{E_+e}, v{G_+e}, v{G_+e+1}')
                p(f'v_lshlrev_b32 v{G_+e}, 16, v{E_+e}')
                p(f'v_and_b32 v{G_+e+1}, 0xffff0000, v{E_+e}')
            for e in range(8): p(f'v_mul_f32 v{G_+e}, v{G_+e}, v{U_+e}')
            for e in range(4): p(f'v_cvt_pk_bf16_f32 v{O_+e}, v{G_+2*e}, v{G_+2*e+1}')
            p(f'buffer_store_dwordx4 {vr(O_,4)}, v{VA}, {WS}, s20 offen offset:{t*1024 + jh*512}')
    stamp(p, 5)
    stamp_flush(p, 6, WS, TMP, 4, 's4')
    p.raw('K4_END:')
    p('s_endpgm')
    return p, descriptor(name, 256, 144), f'; @launch kernel={name} grid=(256,1,1) block=(256,1,1) lds={CT + 5120}'

def build(kernels, path):
    heads = []; bodies = []; descs = []
    for g in kernels:
        p, d, l = g()
        heads.append(l); bodies.append(p.text()); descs.append(d)
    hdr = open('adaLN_cond__sliding_block__swiglu_ffn__prompt.s.ref').read().split('\n')
    top = [l for l in hdr if l.startswith(';') and '@launch' not in l and 'Override' not in l and 'grid=ceil' not in l]
    s = '\n'.join(top) + '\n' + '\n'.join(heads) + '\n'
    s += '.amdgcn_target "amdgcn-amd-amdhsa--gfx950"\n.text\n'
    s += '\n'.join(bodies) + '\n'
    s += '.section .rodata,"a"\n' + '\n'.join(descs) + '\n'
    open(path, 'w').write(s)

if __name__ == '__main__':
    if len(sys.argv) > 1 and sys.argv[1] == 'stamps':
        STAMPS = True
    build([gen_k0, gen_k1, gen_k2, lambda: gen_k35(3), gen_k4, lambda: gen_k35(5)], 'p1.s')
```
